```python
import torch

def _softmax(x, axis=-1):
    return torch.softmax(x, dim=axis)
def _gelu(x):
    return torch.nn.functional.gelu(x, approximate="tanh")
def _silu(x):
    return torch.nn.functional.silu(x)
def _sigmoid(x):
    return torch.sigmoid(x)
def _layernorm(x, axis=-1, eps=1e-5):
    m = x.mean(dim=axis, keepdim=True)
    v = x.var(dim=axis, keepdim=True, unbiased=False)
    return (x - m) / torch.sqrt(v + eps)
def _scatter_add(tgt, idx, src, axis=0):
    return tgt.clone().index_add_(axis, idx, src)
def _segment_sum(src, seg, n):
    out = torch.zeros((n,) + src.shape[1:], dtype=src.dtype)
    return out.index_add_(0, seg, src)
def _pad(x, pw):
    flat = tuple(v for pair in reversed(pw) for v in pair)
    return torch.nn.functional.pad(x, flat)

kernel_name = 'standalone__gqa_block_cached__near_ridge'

def setup_inputs():

    _w = (lambda a: (lambda t: t.to(torch.bfloat16) if t.is_floating_point() else t)(torch.as_tensor(a)))
    B, Sq, D = 16, 80, 448
    Hq, Hkv, Sk, Dh = 16, 8, 512, 256
    assert Hq % Hkv == 0, (Hq, Hkv)
    return {
        "x": _w((lambda *s: torch.randn(*s, dtype=torch.bfloat16) * 0.8)(B, Sq, D)),
        "k_cache": _w((lambda *s: torch.randn(*s, dtype=torch.bfloat16) * 0.8)(B, Hkv, Sk, Dh)),
        "v_cache": _w((lambda *s: torch.randn(*s, dtype=torch.bfloat16) * 0.05)(B, Hkv, Sk, Dh)),
        "wq": _w((lambda *s: torch.randn(*s, dtype=torch.bfloat16) * 0.8)(D, Hq * Dh) * (D ** -0.5)),
        "wo": _w((lambda *s: torch.randn(*s, dtype=torch.bfloat16) * 0.05)(Hq * Dh, D) * ((Hq * Dh) ** -0.5)),
    }

def reference(x, k_cache, v_cache, wq, wo):
    B, Sq, D = x.shape
    Hq, Dh = 16, 256
    Hkv = k_cache.shape[1]
    rep = Hq // Hkv
    q = (lambda x, *d: x.permute(*d))((x @ wq).reshape(B, Sq, Hq, Dh), 0, 2, 1, 3)
    k = (lambda x, n, axis: torch.repeat_interleave(x, n, dim=axis))(k_cache, rep, axis=1)
    v = (lambda x, n, axis: torch.repeat_interleave(x, n, dim=axis))(v_cache, rep, axis=1)
    scores = torch.einsum("bhqd,bhkd->bhqk", q, k) * (Dh ** -0.5)
    p = _softmax(scores, axis=-1)
    o = torch.einsum("bhqk,bhkd->bhqd", p, v)
    return (lambda x, *d: x.permute(*d))(o, 0, 2, 1, 3).reshape(B, Sq, Hq * Dh) @ wo
```

```python
import sys
HDR = """; @launch grid=(256,1,1) block=(256,1,1) lds={lds}
.amdgcn_target "amdgcn-amd-amdhsa--gfx950"
.text
.globl standalone__gqa_block_cached__near_ridge_kernel
.p2align 8
.type standalone__gqa_block_cached__near_ridge_kernel,@function
standalone__gqa_block_cached__near_ridge_kernel:
"""
FTR = """
.section .rodata,"a"
.p2align 6
.amdhsa_kernel standalone__gqa_block_cached__near_ridge_kernel
  .amdhsa_next_free_vgpr {vgpr}
  .amdhsa_next_free_sgpr 102
  .amdhsa_accum_offset {acc}
  .amdhsa_group_segment_fixed_size 0
  .amdhsa_kernarg_size 64
  .amdhsa_user_sgpr_count 2
  .amdhsa_user_sgpr_kernarg_segment_ptr 1
  .amdhsa_system_sgpr_workgroup_id_x 1
.end_amdhsa_kernel
"""
def gen(dst, pattern, depth, order, share, flags="", prefetch=0):
    L = []
    e = L.append
    e("s_cmp_ge_u32 s2, 256")
    e("s_cbranch_scc1 L_end")
    e("s_memrealtime s[40:41]")
    e("s_load_dwordx4 s[4:7], s[0:1], 8")
    e("s_load_dwordx2 s[8:9], s[0:1], 56")
    e("s_and_b32 s10, s2, 7")
    e("s_lshr_b32 s11, s2, 3")
    e("s_and_b32 s12, s11, 1")
    e("s_lshr_b32 s13, s11, 1")
    e("s_lshl_b32 s14, s13, 3")
    e("s_add_u32 s14, s14, s10")
    e("s_lshl_b32 s14, s14, 18")
    e("v_lshrrev_b32 v1, 6, v0")
    e("s_nop 0")
    e("v_readfirstlane_b32 s15, v1")
    e("v_and_b32 v2, 63, v0")
    e("s_waitcnt lgkmcnt(0)")
    for r, b in ((16, 4), (20, 6)):
        e(f"s_add_u32 s{r}, s{b}, s14")
        e(f"s_addc_u32 s{r+1}, s{b+1}, 0")
        e(f"s_mov_b32 s{r+2}, 262144")
        e(f"s_mov_b32 s{r+3}, 0x00020000")
    per_wave = 65536 if share else 32768
    ninstr = per_wave // 1024
    if pattern == "lin":
        e("v_lshlrev_b32 v3, 4, v2")
        e(f"s_mul_i32 s24, s15, {per_wave}")
        def off(i): return i*1024
    elif pattern == "frag":
        e("v_and_b32 v3, 15, v2")
        e("v_lshlrev_b32 v3, 9, v3")
        e("v_lshrrev_b32 v4, 4, v2")
        e("v_lshlrev_b32 v4, 4, v4")
        e("v_add_u32 v3, v3, v4")
        e(f"s_mul_i32 s24, s15, {per_wave}")
        def off(i): return (i >> 3)*8192 + (i & 7)*64
    elif pattern == "col":
        e("v_lshrrev_b32 v3, 3, v2")
        e("v_lshlrev_b32 v3, 9, v3")
        e("v_and_b32 v4, 7, v2")
        e("v_lshlrev_b32 v4, 4, v4")
        e("v_add_u32 v3, v3, v4")
        e("s_mul_i32 s24, s15, 128")
        def off(i): return i*4096
    if not share:
        if pattern == "col":
            e("s_lshl_b32 s25, s12, 17")
        else:
            e("s_lshl_b32 s25, s12, 17")
        e("s_add_u32 s24, s24, s25")
        e("s_mov_b32 s26, s24")
        e("s_mov_b32 s27, s24")
        half_off = 0
    else:
        half = off(ninstr//2)
        if order:
            e(f"s_mul_i32 s25, s12, {half}")
            e("s_add_u32 s26, s24, s25")
            e("s_sub_u32 s27, s24, s25")
        else:
            e("s_mov_b32 s26, s24")
            e("s_mov_b32 s27, s24")
    if dst == "lds":
        e(f"s_mul_i32 s28, s15, {depth*1024}")
    seq = []
    for srd in (16, 20):
        for i in range(ninstr):
            seq.append((srd, 26 if i < ninstr//2 else 27, off(i)))
    for n, (srd, sb, o) in enumerate(seq):
        e(f"s_add_u32 s30, s{sb}, {o}")
        if n >= depth:
            e(f"s_waitcnt vmcnt({depth-1})")
        if dst == "reg":
            r = 8 + (n % depth)*4
            e(f"buffer_load_dwordx4 v[{r}:{r+3}], v3, s[{srd}:{srd+3}], s30 offen {flags}")
        else:
            e(f"s_add_u32 m0, s28, {(n % depth)*1024}")
            e("s_nop 0")
            e(f"buffer_load_dwordx4 v3, s[{srd}:{srd+3}], s30 offen lds {flags}")
    e("s_waitcnt vmcnt(0)")
    e("s_barrier")
    e("s_memrealtime s[42:43]")
    e("s_waitcnt lgkmcnt(0)")
    e("s_add_u32 s32, s8, 0x0F000000")
    e("s_addc_u32 s33, s9, 0")
    e("s_mov_b32 s34, 65536*4")
    e("s_mov_b32 s35, 0x00020000")
    e("v_mov_b32 v4, s40"); e("v_mov_b32 v5, s41"); e("v_mov_b32 v6, s42"); e("v_mov_b32 v7, s43")
    e("s_lshl_b32 s36, s2, 8")
    e("v_mov_b32 v3, 0")
    e("v_cmp_eq_u32 vcc, 0, v0")
    e("s_and_saveexec_b64 s[38:39], vcc")
    e("s_cbranch_execz L_end")
    e("buffer_store_dwordx4 v[4:7], v3, s[32:35], s36 offen")
    e("L_end:")
    e("s_endpgm")
    lds = depth*1024*4 if dst == "lds" else 0
    lds = max(lds, 90*1024)
    return HDR.format(lds=lds) + "\n".join("    "+l if not l.endswith(":") else l for l in L) + FTR.format(vgpr=256, acc=256)

if __name__ == "__main__":
    import itertools, os
    os.makedirs("k", exist_ok=True)
    files = []
    for dst, pat, depth, order, share in [
        ("reg","lin",8,0,0),("reg","lin",16,0,0),("reg","lin",32,0,0),
        ("reg","frag",16,0,0),("reg","frag",32,0,0),
        ("lds","lin",8,0,0),("lds","lin",16,0,0),("lds","lin",32,0,0),
        ("lds","col",16,0,0),("lds","col",32,0,0),
        ("reg","lin",16,0,1),("reg","lin",32,0,1),("reg","lin",16,1,1),("reg","lin",32,1,1),
        ("reg","frag",16,0,1),("reg","frag",32,0,1),("reg","frag",16,1,1),("reg","frag",32,1,1),
        ("lds","lin",16,0,1),("lds","lin",32,0,1),("lds","lin",16,1,1),("lds","lin",32,1,1),
        ("lds","col",16,0,1),("lds","col",32,0,1),("lds","col",16,1,1),("lds","col",32,1,1),
        ]:
        fn = f"s_{dst}_{pat}_d{depth}_o{order}_s{share}.s"
        open(fn, "w").write(gen(dst, pat, depth, order, share))
        files.append(fn)
    print(" ".join(os.path.relpath(f, "code") for f in files))
```

```python
import sys, os
sys.path.insert(0, "tools")
from gen_stream import FTR
HDR = """; @launch grid=(256,1,1) block=({blk},1,1) lds={lds}
.amdgcn_target "amdgcn-amd-amdhsa--gfx950"
.text
.globl standalone__gqa_block_cached__near_ridge_kernel
.p2align 8
.type standalone__gqa_block_cached__near_ridge_kernel,@function
standalone__gqa_block_cached__near_ridge_kernel:
"""
def gen(ndma, nds, ntr, waves=4, spread=True, nunits=64, regload=False, nmfma=20, nvalu=0):
    L = []; e = L.append
    e("s_cmp_ge_u32 s2, 256")
    e("s_cbranch_scc1 L_end")
    e("s_load_dwordx2 s[4:5], s[0:1], 24")
    e("s_load_dwordx2 s[8:9], s[0:1], 56")
    e("v_lshrrev_b32 v1, 6, v0")
    e("s_nop 0")
    e("v_readfirstlane_b32 s15, v1")
    e("v_and_b32 v2, 63, v0")
    e("v_lshlrev_b32 v3, 4, v2")
    e("s_waitcnt lgkmcnt(0)")
    e("s_mov_b32 s16, s4"); e("s_mov_b32 s17, s5"); e("s_mov_b32 s18, 3670016"); e("s_mov_b32 s19, 0x00020000")
    e("s_lshl_b32 s20, s15, 14")
    e("v_add_u32 v4, s20, v3")
    e("s_and_b32 s21, s2, 7")
    e("s_lshl_b32 s21, s21, 18")
    e("s_lshl_b32 s22, s15, 15")
    e("s_add_u32 s21, s21, s22")
    for i in range(120): e(f"v_mov_b32 v{8+i}, 0")
    e("s_mov_b32 s23, 0")
    e("s_mov_b32 s24, 0")
    e("s_barrier")
    e("s_memrealtime s[40:41]")
    e("s_memtime s[44:45]")
    e("L_loop:")
    for half in range(2):
        items = []
        for i in range(ndma):
            if regload:
                items.append([f"buffer_load_dwordx4 v[{200+4*(i+4*half)}:{203+4*(i+4*half)}], v3, s[16:19], s25 offen offset:{i*1024}"])
            else:
                items.append([f"buffer_load_dwordx4 v3, s[16:19], s25 offen offset:{i*1024} lds"])
        for i in range(nds):
            r = 128 + half*36 + 4*i
            items.append([f"ds_read_b128 v[{r}:{r+3}], v4 offset:{i*1024}"])
        for i in range(ntr):
            r = 128 + half*36 + 20 + 2*i
            items.append([f"ds_read_b64_tr_b16 v[{r}:{r+1}], v4 offset:{i*512+8192}"])
        for i in range(nvalu):
            items.append([f"v_fma_f32 v{240+(i%8)}, v248, v249, v250"])
        e(f"s_add_u32 s25, s21, s24")
        e(f"s_add_u32 s24, s24, 4096")
        e(f"s_and_b32 s24, s24, 0x7fff")
        e(f"s_add_u32 m0, s20, {half*4096}")
        if ndma: e(f"s_waitcnt vmcnt({3*ndma})")
        k = 0
        per = max(1, (len(items) + nmfma - 1)//nmfma) if spread else len(items)
        for m in range(nmfma):
            a = 8 + (m % 20)*4
            e(f"v_mfma_f32_16x16x32_bf16 v[{a}:{a+3}], v[88:91], v[92:95], v[{a}:{a+3}]")
            for _ in range(per):
                if k < len(items):
                    for x in items[k]: e(x)
                    k += 1
        e("s_waitcnt lgkmcnt(0)")
    e("s_add_u32 s23, s23, 2")
    e(f"s_cmp_lt_u32 s23, {nunits}")
    e("s_cbranch_scc1 L_loop")
    e("s_memtime s[46:47]")
    e("s_waitcnt vmcnt(0)")
    e("s_barrier")
    e("s_memrealtime s[42:43]")
    e("s_waitcnt lgkmcnt(0)")
    e("s_sub_u32 s46, s46, s44")
    e("s_add_u32 s32, s8, 0x0F000000")
    e("s_addc_u32 s33, s9, 0")
    e("s_mov_b32 s34, 65536*4")
    e("s_mov_b32 s35, 0x00020000")
    e("s_lshl_b32 s36, s2, 8")
    e("v_mov_b32 v3, 0")
    e("v_cmp_eq_u32 vcc, 0, v0")
    e("s_and_saveexec_b64 s[38:39], vcc")
    e("s_cbranch_execz L_end")
    for s in range(2):
        e(f"v_mov_b32 v4, s{40+2*s}"); e(f"v_mov_b32 v5, s{41+2*s}")
        e(f"buffer_store_dwordx2 v[4:5], v3, s[32:35], s36 offen offset:{8*s}")
        e("s_nop 1")
    e("s_add_u32 s48, s40, s46"); e("s_addc_u32 s49, s41, 0")
    e("v_mov_b32 v4, s48"); e("v_mov_b32 v5, s49")
    e("buffer_store_dwordx2 v[4:5], v3, s[32:35], s36 offen offset:16")
    e("L_end:")
    e("s_endpgm")
    return HDR.format(lds=140*1024, blk=waves*64) + "\n".join("    "+l if not l.endswith(":") else l for l in L) + FTR.format(vgpr=256, acc=256)
if __name__ == "__main__":
    os.makedirs("k", exist_ok=True)
    fs = []
    for name, kw in [
        ("base", dict(ndma=0, nds=0, ntr=0)),
        ("dma4", dict(ndma=4, nds=0, ntr=0)),
        ("dma4burst", dict(ndma=4, nds=0, ntr=0, spread=False)),
        ("reg4", dict(ndma=4, nds=0, ntr=0, regload=True)),
        ("ds5tr8", dict(ndma=0, nds=5, ntr=8)),
        ("dma4ds5tr8", dict(ndma=4, nds=5, ntr=8)),
        ("dma4ds5tr8v20", dict(ndma=4, nds=5, ntr=8, nvalu=20)),
        ("dma4ds5tr8v40", dict(ndma=4, nds=5, ntr=8, nvalu=40)),
        ("w8_base", dict(ndma=0, nds=0, ntr=0, waves=8, nmfma=10)),
        ("w8_dma2ds5tr4", dict(ndma=2, nds=5, ntr=4, waves=8, nmfma=10)),
        ("w8_dma2ds5tr4v10", dict(ndma=2, nds=5, ntr=4, waves=8, nmfma=10, nvalu=10)),
        ("w8_dma2ds5tr4v20", dict(ndma=2, nds=5, ntr=4, waves=8, nmfma=10, nvalu=20)),
        ]:
        fn = f"is_{name}.s"
        open(fn, "w").write(gen(**kw)); fs.append(os.path.relpath(fn, "code"))
    print(" ".join(fs))
```
